```python
import torch

def _softmax(x, axis=-1):
    return torch.softmax(x, dim=axis)
def _gelu(x):
    return torch.nn.functional.gelu(x, approximate="tanh")
def _silu(x):
    return torch.nn.functional.silu(x)
def _sigmoid(x):
    return torch.sigmoid(x)
def _layernorm(x, axis=-1, eps=1e-5):
    m = x.mean(dim=axis, keepdim=True)
    v = x.var(dim=axis, keepdim=True, unbiased=False)
    return (x - m) / torch.sqrt(v + eps)
def _scatter_add(tgt, idx, src, axis=0):
    return tgt.clone().index_add_(axis, idx, src)
def _segment_sum(src, seg, n):
    out = torch.zeros((n,) + src.shape[1:], dtype=src.dtype)
    return out.index_add_(0, seg, src)
def _pad(x, pw):
    flat = tuple(v for pair in reversed(pw) for v in pair)
    return torch.nn.functional.pad(x, flat)

kernel_name = 'concat_heads__sliding_block_cached__sliding_block_cached__decode'

def setup_inputs():

    _w = (lambda a: (lambda t: t.to(torch.bfloat16) if t.is_floating_point() else t)(torch.as_tensor(a)))
    def _A_setup():
        B, Sq, D = 8, 1, 512
        Hq, Hkv, Sk, Dh = 32, 8, 8192, 128
        assert Hq % Hkv == 0, (Hq, Hkv)
        return {
            "x": _w((lambda *s: torch.randn(*s, dtype=torch.bfloat16) * 0.8)(B, Sq, D)),
            "k_cache": _w((lambda *s: torch.randn(*s, dtype=torch.bfloat16) * 0.8)(B, Hkv, Sk, Dh)),
            "v_cache": _w((lambda *s: torch.randn(*s, dtype=torch.bfloat16) * 0.05)(B, Hkv, Sk, Dh)),
            "wq": _w((lambda *s: torch.randn(*s, dtype=torch.bfloat16) * 0.8)(D, Hq * Dh) * (D ** -0.5)),
            "wo": _w((lambda *s: torch.randn(*s, dtype=torch.bfloat16) * 0.05)(Hq * Dh, D) * ((Hq * Dh) ** -0.5)),
        }
    _A_in = _A_setup()

    def _B_setup():
        B, Sq, D = 8, 1, 512
        Hq, Hkv, Sk, Dh = 32, 8, 8192, 128
        assert Hq % Hkv == 0, (Hq, Hkv)
        return {
            "x": _w((lambda *s: torch.randn(*s, dtype=torch.bfloat16) * 0.8)(B, Sq, D)),
            "k_cache": _w((lambda *s: torch.randn(*s, dtype=torch.bfloat16) * 0.8)(B, Hkv, Sk, Dh)),
            "v_cache": _w((lambda *s: torch.randn(*s, dtype=torch.bfloat16) * 0.05)(B, Hkv, Sk, Dh)),
            "wq": _w((lambda *s: torch.randn(*s, dtype=torch.bfloat16) * 0.8)(D, Hq * Dh) * (D ** -0.5)),
            "wo": _w((lambda *s: torch.randn(*s, dtype=torch.bfloat16) * 0.05)(Hq * Dh, D) * ((Hq * Dh) ** -0.5)),
        }
    _B_in = _B_setup()

    return {
        "A_x": _A_in["x"],
        "A_k_cache": _A_in["k_cache"],
        "A_v_cache": _A_in["v_cache"],
        "A_wq": _A_in["wq"],
        "A_wo": _A_in["wo"],
        "B_x": _B_in["x"],
        "B_k_cache": _B_in["k_cache"],
        "B_v_cache": _B_in["v_cache"],
        "B_wq": _B_in["wq"],
        "B_wo": _B_in["wo"],
    }

def reference(A_x, A_k_cache, A_v_cache, A_wq, A_wo, B_x, B_k_cache, B_v_cache, B_wq, B_wo):
    def _A_ref(x, k_cache, v_cache, wq, wo):
        B, Sq, D = x.shape
        Hq, Dh = 32, 128
        Hkv, Sk = k_cache.shape[1], k_cache.shape[2]
        W = min(4096, max(256, Sk // 4))
        rep = Hq // Hkv
        q = (lambda x, *d: x.permute(*d))((x @ wq).reshape(B, Sq, Hq, Dh), 0, 2, 1, 3)
        k = (lambda x, n, axis: torch.repeat_interleave(x, n, dim=axis))(k_cache[:, :, Sk - W:, :], rep, axis=1)
        v = (lambda x, n, axis: torch.repeat_interleave(x, n, dim=axis))(v_cache[:, :, Sk - W:, :], rep, axis=1)
        scores = torch.einsum("bhqd,bhkd->bhqk", q, k) * (Dh ** -0.5)
        p = _softmax(scores, axis=-1)
        o = torch.einsum("bhqk,bhkd->bhqd", p, v)
        return (lambda x, *d: x.permute(*d))(o, 0, 2, 1, 3).reshape(B, Sq, Hq * Dh) @ wo

    def _B_ref(x, k_cache, v_cache, wq, wo):
        B, Sq, D = x.shape
        Hq, Dh = 32, 128
        Hkv, Sk = k_cache.shape[1], k_cache.shape[2]
        W = min(4096, max(256, Sk // 4))
        rep = Hq // Hkv
        q = (lambda x, *d: x.permute(*d))((x @ wq).reshape(B, Sq, Hq, Dh), 0, 2, 1, 3)
        k = (lambda x, n, axis: torch.repeat_interleave(x, n, dim=axis))(k_cache[:, :, Sk - W:, :], rep, axis=1)
        v = (lambda x, n, axis: torch.repeat_interleave(x, n, dim=axis))(v_cache[:, :, Sk - W:, :], rep, axis=1)
        scores = torch.einsum("bhqd,bhkd->bhqk", q, k) * (Dh ** -0.5)
        p = _softmax(scores, axis=-1)
        o = torch.einsum("bhqk,bhkd->bhqd", p, v)
        return (lambda x, *d: x.permute(*d))(o, 0, 2, 1, 3).reshape(B, Sq, Hq * Dh) @ wo

    a = _A_ref(A_x, A_k_cache, A_v_cache, A_wq, A_wo)
    b = _B_ref(B_x, B_k_cache, B_v_cache, B_wq, B_wo)
    return torch.concatenate([a, b], axis=-1)
```

```python
import re
TRANS = ("v_exp_f32","v_log_f32","v_rcp_f32","v_rsq_f32","v_sqrt_f32","v_sin_f32","v_cos_f32")
def regs(op):
    op = op.strip()
    op = op.lstrip("-")
    if op.startswith("abs(") : op = op[4:-1]
    if op.startswith("|"): op = op.strip("|")
    m = re.fullmatch(r"([vsa])\[(\d+):(\d+)\]", op)
    if m:
        r = set(range(int(m.group(2)), int(m.group(3))+1))
        if m.group(1)=="v": return r, set()
        if m.group(1)=="a": return {x+1000 for x in r}, set()
        return set(), r
    m = re.fullmatch(r"([vsa])(\d+)", op)
    if m:
        x = int(m.group(2))
        if m.group(1)=="v": return {x}, set()
        if m.group(1)=="a": return {x+1000}, set()
        return set(), {x}
    if op == "vcc": return set(), {"vcc_lo","vcc_hi"}
    if op in ("vcc_lo","vcc_hi"): return set(), {op}
    if op == "exec": return set(), {"exec_lo","exec_hi"}
    if op in ("exec_lo","exec_hi"): return set(), {op}
    if op == "m0": return set(), {"m0"}
    return set(), set()

class Em:
    def __init__(self):
        self.lines = []
        self.hist = []
        self.nops = 0
    def raw(self, t): self.lines.append(t)
    def label(self, name): self.lines.append(name + ":")
    def c(self, t): self.lines.append("; " + t)
    def parse(self, text):
        t = text.split(";")[0].strip()
        mn, _, rest = t.partition(" ")
        ops = [o.strip() for o in re.split(r",\s*(?![^\[]*\])", rest)] if rest.strip() else []
        mods = ""
        if ops:
            parts = ops[-1].split(None, 1)
            ops[-1] = parts[0]
            mods = parts[1] if len(parts) > 1 else ""
        I = dict(mn=mn, vw=set(), vr=set(), sw=set(), sr=set(), kind="other", states=1, a=set(), b=set(), cc=set(), dpp=False, wide=False, passes=0)
        def rd(os):
            for o in os:
                v, s = regs(o); I["vr"] |= v; I["sr"] |= s
        def wr(os):
            for o in os:
                v, s = regs(o); I["vw"] |= v; I["sw"] |= s
        if mn == "s_nop":
            I["states"] = int(ops[0], 0) + 1
        elif mn.startswith("v_mfma"):
            I["kind"] = "mfma"; wr(ops[:1]); rd(ops[1:])
            I["a"] = regs(ops[1])[0]; I["b"] = regs(ops[2])[0]; I["cc"] = regs(ops[3])[0]
            I["passes"] = 8 if "32x32" in mn else 4
        elif mn.startswith("v_"):
            I["kind"] = "trans" if mn.replace("_e32","").replace("_e64","") in TRANS else "valu"
            if "permlane" in mn and "swap" in mn:
                wr(ops); rd(ops); I["perml"] = True
            elif mn.startswith(("v_add_co","v_sub_co","v_addc_co","v_subb_co")):
                wr(ops[:2]); rd(ops[2:])
            else:
                wr(ops[:1]); rd(ops[1:])
                if mn.startswith(("v_fmac","v_mac","v_writelane","v_dot2c")): rd(ops[:1])
            if "_dpp" in mn or "row_" in mods or "quad_perm" in mods:
                I["dpp"] = True; rd(ops[:1])
            if mn.startswith(("v_readlane","v_readfirstlane")): I["rl"] = True
            if mn.startswith("v_cmpx"): I["sw"] |= {"exec_lo","exec_hi"}
        elif mn.startswith(("buffer_load","global_load")):
            I["kind"] = "vmem"
            if " lds" in (" " + mods) or "_lds_" in mn: rd(ops); I["sr"].add("m0"); I["ldsdma"]=True
            else: wr(ops[:1]); rd(ops[1:])
        elif mn.startswith(("buffer_store","global_store","buffer_atomic","global_atomic")):
            I["kind"] = "vmem"; rd(ops)
            I["wide"] = mn.endswith(("x3","x4"))
            I["data"] = regs(ops[0] if mn.startswith("buffer") else ops[1])[0]
            if "atomic" in mn and "sc0" in mods: wr(ops[:1])
        elif mn.startswith("ds_"):
            I["kind"] = "ds"
            if mn.startswith(("ds_read","ds_bpermute","ds_permute","ds_swizzle")): wr(ops[:1]); rd(ops[1:])
            else: rd(ops)
        elif mn.startswith("s_"):
            I["kind"] = "salu"
            if mn.startswith(("s_cmp","s_cbranch","s_branch","s_waitcnt","s_barrier","s_endpgm","s_setprio","s_sleep","s_bitcmp")): rd(ops)
            else: wr(ops[:1]); rd(ops[1:])
        return I
    def need(self, P, I):
        n = 0
        pv = P["kind"] in ("valu","trans")
        iv = I["kind"] in ("valu","trans")
        if pv and I["kind"] == "mfma" and P["vw"] & I["vr"]: n = max(n, 2)
        if P["kind"] == "mfma":
            p = P["passes"]; big = {4:8, 8:12}[p]; ov = {4:6, 8:10}[p]; war = {4:3, 8:7}[p]
            D = P["vw"]
            if I["kind"] == "mfma":
                if D & (I["a"] | I["b"]): n = max(n, big)
                if D & I["cc"]:
                    if not (D == I["cc"] and I["passes"] == p): n = max(n, ov)
                elif D & I["vw"]: n = max(n, big)
            elif iv or I["kind"] in ("vmem","ds"):
                if D & (I["vr"] | I["vw"]): n = max(n, big)
            if iv and P["cc"] & I["vw"]: n = max(n, war)
        if P["kind"] == "trans" and I["kind"] in ("valu","mfma") and P["vw"] & I["vr"]: n = max(n, 1)
        if pv and P["sw"]:
            if iv and P["sw"] & I["sr"]: n = max(n, 4 if I["mn"].startswith(("v_readlane","v_writelane")) else 2)
            if I["kind"] == "vmem" and P["sw"] & I["sr"]: n = max(n, 5)
            if P["sw"] & {"exec_lo","exec_hi"}: n = max(n, 5)
        if pv and P["vw"] & I["vr"]:
            if I.get("rl"): n = max(n, 1)
            if I.get("perml") or I["dpp"]: n = max(n, 2)
        if P["kind"] == "vmem" and P["wide"] and P["data"] & I["vw"]: n = max(n, 2 if iv else 1)
        if P["kind"] == "salu" and "m0" in P["sw"] and I.get("ldsdma"): n = max(n, 1)
        return n
    def __call__(self, text):
        for t in text.strip().split("\n"):
            t = t.strip()
            if not t: continue
            if t.endswith(":") or t.startswith((";", ".")):
                self.lines.append(t); continue
            I = self.parse(t)
            dist = 0; pad = 0
            for P in reversed(self.hist):
                pad = max(pad, self.need(P, I) - dist)
                dist += P["states"]
                if dist > 24: break
            while pad > 0:
                k = min(pad, 16)
                self.lines.append("    s_nop %d" % (k-1)); self.hist.append(self.parse("s_nop %d" % (k-1))); pad -= k; self.nops += 1
            self.lines.append("    " + t)
            self.hist.append(I)
            if len(self.hist) > 64: self.hist = self.hist[-40:]
    def text(self): return "\n".join(self.lines) + "\n"
```

```python
import sys, struct
from asmlib import *
from emit import Em

def f32bits(x): return struct.unpack("<I", struct.pack("<f", x))[0]

WS_EPOCH = 0
WS_Q   = 0x1000
WS_LSE = 0x50000
WS_O   = 0x60000
WS_PO  = 0x100000
WS_END = 0x300000
WS_STAMP = 256 << 20
L_P1 = 0
L_QS = 16384
L_ML = L_QS + 1024
L_OP = L_ML + 256
L_A  = L_OP + 8*2112
L_END = L_A + 16*272

def gen(out, stamps=False, NT="nt", K0=16, KW=8, mapping=0):
    e = Em()
    nst = [0]
    def stamp(name=""):
        if not stamps: return
        k = nst[0]; nst[0] += 1
        assert k < 16
        e("s_memrealtime s[%d:%d] ; stamp %d %s" % (70+2*k, 71+2*k, k, name))
    e.raw(HEADER + "; Generated by dev/gen.py (hand-written generator)\n; @launch grid=(256,1,1) block=(512,1,1) lds=%d" % L_END)
    e.raw('.amdgcn_target "amdgcn-amd-amdhsa--gfx950"\n.text\n.globl %s_kernel\n.p2align 8\n.type %s_kernel,@function\n%s_kernel:' % (NAME,NAME,NAME))
    if stamps:
        for k in range(16): e("s_mov_b64 s[%d:%d], 0" % (70+2*k, 71+2*k))
    stamp("start")
    e("s_cmp_ge_u32 s2, 256")
    e("s_cbranch_scc1 L_end")
    e.c("decode: g = id&7, br = id>>7, u = (id>>3)&15")
    e("""
    s_lshr_b32 s5, s2, 7
    s_mul_i32 s7, s5, 40
    s_add_u32 s64, s0, s7
    s_addc_u32 s65, s1, 0
    s_load_dwordx8 s[8:15], s[64:65], 0
    s_load_dwordx2 s[22:23], s[0:1], 96
    s_load_dwordx2 s[16:17], s[64:65], 32
    s_load_dwordx2 s[18:19], s[0:1], 80
    s_and_b32 s4, s2, 7
    s_lshr_b32 s6, s2, 3
    s_and_b32 s6, s6, 15
    v_lshrrev_b32 v2, 6, v0
    v_and_b32 v1, 63, v0
    v_readfirstlane_b32 s3, v2
    v_lshrrev_b32 v2, 4, v1
    v_and_b32 v3, 15, v1
    """)
    e.c("v8 = K lane offset, v9 = V lane offset, v10 = wq lane offset, v11 = x lane offset, v12 = wo lane offset")
    e("""
    v_and_b32 v4, 3, v3
    v_lshrrev_b32 v5, 2, v3
    v_lshl_add_u32 v4, v4, 2, v5
    v_lshlrev_b32 v4, 8, v4
    v_lshl_add_u32 v8, v2, 4, v4
    v_lshlrev_b32 v9, 4, v1
    v_lshlrev_b32 v4, 16, v2
    v_lshl_add_u32 v10, v3, 2, v4
    v_lshlrev_b32 v4, 10, v3
    v_lshl_add_u32 v11, v2, 4, v4
    v_lshlrev_b32 v4, 11, v2
    v_lshl_add_u32 v12, v3, 2, v4
    """)
    e.c("scalar offsets")
    e("""
    s_lshr_b32 s66, s6, 1
    s_and_b32 s67, s6, 1
    s_lshl_b32 s68, s66, 3
    s_add_u32 s68, s68, s4
    s_lshl_b32 s68, s68, 21
    s_lshl_b32 s69, s67, 18
    s_add_u32 s68, s68, s69
    s_lshl_b32 s69, s3, 15
    s_add_u32 s68, s68, s69
    s_add_u32 s68, s68, %d
    """ % (6144*256))
    e.c("s62 = j = g*16+u ; s63 = wq byte offset")
    e("""
    s_lshl_b32 s62, s4, 4
    s_add_u32 s62, s62, s6
    s_lshl_b32 s63, s3, 19
    s_lshl_b32 s69, s62, 6
    s_add_u32 s63, s63, s69
    s_mov_b32 s27, 0x20000
    s_mov_b32 s31, 0x20000
    s_mov_b32 s35, 0x20000
    s_mov_b32 s39, 0x20000
    s_mov_b32 s43, 0x20000
    s_mov_b32 s47, 0x20000
    s_mov_b32 s51, 0x20000
    s_lshl_b32 s69, s3, 7
    s_sub_u32 s26, 8192, s69
    s_mov_b32 s30, %d
    s_mov_b32 s34, 32768
    s_mov_b32 s38, 32768
    s_mov_b32 s42, %d
    s_mov_b32 s46, %d
    s_mov_b32 s50, 16384
    s_mov_b32 s53, 0x05040100
    s_mov_b32 s54, 0x07060302
    s_mov_b32 s55, 0x%08x
    s_lshl_b32 s61, s5, 8
    s_waitcnt lgkmcnt(0)
    """ % (63*8192+64, 127*1024+64, (WS_STAMP + 256*16*128) if stamps else WS_END, f32bits(128**-0.5 * 1.4426950408889634)))
    stamp("kernarg")
    e("""
    s_add_u32 s28, s14, s63
    s_addc_u32 s29, s15, 0
    s_add_u32 s24, s8, s69
    s_addc_u32 s25, s9, 0
    s_mov_b32 s44, s22
    s_mov_b32 s45, s23
    """)
    e.c("wq loads (16 dword), x loads (2), epoch")
    for jj in range(2):
        for k in range(8):
            so = (32*jj + k) * 8192
            if so == 0: sr = "0"
            else:
                e("s_mov_b32 s60, %d" % so); sr = "s60"
            e("buffer_load_dword v%d, v10, s[28:31], %s offen %s" % (64 + 8*jj + k, sr, NT))
    e("buffer_load_dwordx4 v[80:83], v11, s[24:27], 0 offen")
    e("buffer_load_dwordx4 v[84:87], v11, s[24:27], 0 offen offset:64")
    e("buffer_load_dword v13, off, s[44:47], s61 sc1")
    e("""
    s_add_u32 s32, s10, s68
    s_addc_u32 s33, s11, 0
    s_add_u32 s36, s12, s68
    s_addc_u32 s37, s13, 0
    """)
    cur = [None]
    def soff(val):
        if val == 0: return "0"
        if cur[0] != val:
            e("s_mov_b32 s56, %d" % val); cur[0] = val
        return "s56"
    def kload(n):
        t, j = divmod(n, 4)
        sr = soff(t*4096)
        e("buffer_load_dwordx4 v[%d:%d], v8, s[32:35], %s offen offset:%d %s" % (128+4*n, 131+4*n, sr, j*64, NT))
    VB = [64, 96, 128, 160]
    def vload(u, i):
        sr = soff((2*u + (i>>2))*4096)
        r = VB[u] + 4*i
        e("buffer_load_dwordx4 v[%d:%d], v9, s[36:39], %s offen offset:%d %s" % (r, r+3, sr, (i&3)*1024, NT))
    for n in range(K0): kload(n)
    e.c("remaining SRDs: WO, OUT.  h = 4g + (u>>2) -> s57, cq = u&3 -> s58")
    e("""
    s_lshr_b32 s57, s6, 2
    s_lshl_b32 s69, s4, 2
    s_add_u32 s57, s57, s69
    s_and_b32 s58, s6, 3
    s_lshl_b32 s69, s57, 17
    s_lshl_b32 s7, s58, 8
    s_add_u32 s69, s69, s7
    s_and_b32 s7, s3, 3
    s_lshl_b32 s7, s7, 6
    s_add_u32 s69, s69, s7
    s_add_u32 s40, s16, s69
    s_addc_u32 s41, s17, 0
    s_mov_b32 s48, s18
    s_mov_b32 s49, s19
    """)
    e.c("P1 LDS write addr v14 = L_P1 + w*2048 + n*128 + g4*32")
    e("""
    s_lshl_b32 s7, s3, 11
    v_lshlrev_b32 v4, 7, v3
    v_lshl_add_u32 v14, v2, 5, v4
    v_add_u32 v14, s7, v14
    """)
    e("s_waitcnt vmcnt(%d)" % K0)
    stamp("wq landed")
    e("v_readfirstlane_b32 s52, v13")
    for jj in range(2):
        for par in range(2):
            for m in range(4):
                e("v_perm_b32 v%d, v%d, v%d, s%d" % (88 + 8*jj + 4*par + m, 64+8*jj+2*m+1, 64+8*jj+2*m, 53+par))
    e("s_add_u32 s52, s52, 0x9E3779B9")
    for jj in range(2):
        for par in range(2):
            d = 104 + 4*par; a = 88 + 8*jj + 4*par; b = 80 + 4*jj
            e("v_mfma_f32_16x16x32_bf16 v[%d:%d], v[%d:%d], v[%d:%d], %s" % (d, d+3, a, a+3, b, b+3, "0" if jj == 0 else "v[%d:%d]" % (d, d+3)))
    for i in range(4):
        e("ds_write2_b32 v14, v%d, v%d offset0:%d offset1:%d" % (104+i, 108+i, 2*i, 2*i+1))
    e("s_waitcnt lgkmcnt(0)")
    e("s_barrier")
    e.c("waves 0,1: reduce + publish q")
    e("s_cmp_ge_u32 s3, 2")
    e("s_cbranch_scc1 L_q_published")
    e("v_lshlrev_b32 v4, 3, v0")
    for w in range(8):
        e("ds_read_b64 v[%d:%d], v4 offset:%d" % (88+2*w, 89+2*w, L_P1 + w*2048))
    e.c("q store offset: WS_Q + br*128K + b*16K + (j*16+rho)*8")
    e("""
    v_lshrrev_b32 v5, 4, v0
    v_lshlrev_b32 v5, 14, v5
    v_lshl_add_u32 v5, v3, 3, v5
    s_lshl_b32 s7, s5, 17
    s_lshl_b32 s69, s62, 7
    s_add_u32 s7, s7, s69
    s_add_u32 s7, s7, %d
    s_waitcnt lgkmcnt(0)
    """ % WS_Q)
    for w in range(4): e("v_pk_add_f32 v[%d:%d], v[%d:%d], v[%d:%d]" % (88+2*w, 89+2*w, 88+2*w, 89+2*w, 96+2*w, 97+2*w))
    for w in range(2): e("v_pk_add_f32 v[%d:%d], v[%d:%d], v[%d:%d]" % (88+2*w, 89+2*w, 88+2*w, 89+2*w, 92+2*w, 93+2*w))
    e("v_pk_add_f32 v[88:89], v[88:89], v[90:91]")
    e("v_cvt_pk_bf16_f32 v6, v88, v89")
    e("v_mov_b32 v7, s52")
    e("buffer_store_dwordx2 v[6:7], v5, s[44:47], s7 offen sc1")
    e.label("L_q_published")
    cur[0] = None
    stamp("q published")
    for n in range(K0, 32): kload(n)
    e.c("q gather addr: WS_Q + br*128K + b*16K + g*2048 + w*256 + (l&15)*16")
    e("""
    s_lshl_b32 s59, s5, 17
    s_lshl_b32 s69, s66, 14
    s_add_u32 s59, s59, s69
    s_lshl_b32 s69, s4, 11
    s_add_u32 s59, s59, s69
    s_lshl_b32 s69, s3, 8
    s_add_u32 s59, s59, s69
    s_add_u32 s59, s59, %d
    v_lshlrev_b32 v15, 4, v3
    s_lshl_b32 s7, s3, 7
    v_lshlrev_b32 v14, 3, v3
    v_add_u32 v14, s7, v14
    """ % WS_Q)
    e("s_waitcnt vmcnt(%d)" % KW)
    e("buffer_load_dwordx4 v[4:7], v15, s[44:47], s59 offen sc1")
    for u in range(2):
        for i in range(8): vload(u, i)
    e("s_waitcnt vmcnt(16)")
    e("s_mov_b32 s7, 0x10000")
    e.label("L_qpoll")
    e("""
    v_cmp_ne_u32 vcc, s52, v5
    v_cmp_ne_u32 s[64:65], s52, v7
    s_or_b64 vcc, vcc, s[64:65]
    s_cbranch_scc0 L_qok
    s_sub_u32 s7, s7, 1
    s_cbranch_scc1 L_qok
    buffer_load_dwordx4 v[4:7], v15, s[44:47], s59 offen sc1
    s_waitcnt vmcnt(0)
    s_branch L_qpoll
    """)
    e.label("L_qok")
    stamp("q polled")
    e("ds_write2_b32 v14, v4, v6 offset0:%d offset1:%d" % (0, 1) if L_QS == 0 else "v_add_u32 v14, %d, v14\nds_write2_b32 v14, v4, v6 offset0:0 offset1:1" % L_QS)
    e.c("q operand read addr: (n&3)*256 + c*16")
    e("""
    v_and_b32 v4, 3, v3
    v_lshlrev_b32 v5, 8, v4
    v_lshl_add_u32 v5, v2, 4, v5
    s_waitcnt lgkmcnt(0)
    s_barrier
    """)
    for j in range(4): e("ds_read_b128 v[%d:%d], v5 offset:%d" % (16+4*j, 19+4*j, L_QS + j*64))
    e.c("v14 = ML write addr (n&3)*64 + w*8 ; v15 = ML read addr (n&3)*64")
    e("""
    v_lshlrev_b32 v15, 6, v4
    s_lshl_b32 s7, s3, 3
    v_add_u32 v14, s7, v15
    s_waitcnt lgkmcnt(0)
    """)
    for t in range(8):
        for j in range(4):
            d = 32 + 4*t; a = 128 + 16*t + 4*j; b = 16 + 4*j
            e("v_mfma_f32_16x16x32_bf16 v[%d:%d], v[%d:%d], v[%d:%d], %s" % (d, d+3, a, a+3, b, b+3, "0" if j == 0 else "v[%d:%d]" % (d, d+3)))
        if t == 3:
            pass
    stamp("qk done")
    cur[0] = None
    for u in range(2, 4):
        for i in range(8): vload(u, i)
    e.c("softmax")
    e("v_max3_f32 v4, v32, v33, v34")
    for k in range(35, 63, 2): e("v_max3_f32 v4, v4, v%d, v%d" % (k, k+1))
    e("v_max_f32 v4, v4, v63")
    e("""
    v_mov_b32 v5, v4
    v_permlane32_swap_b32 v4, v5
    v_max_f32 v4, v4, v5
    v_mov_b32 v5, v4
    v_permlane16_swap_b32 v4, v5
    v_max_f32 v4, v4, v5
    v_mul_f32 v6, s55, v4
    """)
    for k in range(32, 64): e("v_fma_f32 v%d, v%d, s55, -v6" % (k, k))
    for k in range(32, 64): e("v_exp_f32 v%d, v%d" % (k, k))
    e("v_add_f32 v5, v32, v33")
    e("v_add_f32 v7, v34, v35")
    for k in range(36, 64, 2):
        e("v_add_f32 v5, v5, v%d" % k); e("v_add_f32 v7, v7, v%d" % (k+1))
    e("""
    v_add_f32 v5, v5, v7
    v_mov_b32 v7, v5
    v_permlane32_swap_b32 v5, v7
    v_add_f32 v5, v5, v7
    v_mov_b32 v7, v5
    v_permlane16_swap_b32 v5, v7
    v_add_f32 v7, v5, v7
    ds_write_b64 v14, v[6:7] offset:%d
    s_waitcnt lgkmcnt(0)
    s_barrier
    """ % L_ML)
    for k in range(4): e("ds_read_b128 v[%d:%d], v15 offset:%d" % (240+4*k, 243+4*k, L_ML + 16*k))
    e("s_waitcnt lgkmcnt(0)")
    e("""
    v_max3_f32 v4, v240, v242, v244
    v_max3_f32 v4, v4, v246, v248
    v_max3_f32 v4, v4, v250, v252
    v_max_f32 v4, v4, v254
    """)
    for k in range(8): e("v_sub_f32 v%d, v%d, v4" % (240+2*k, 240+2*k))
    e("v_sub_f32 v6, v6, v4")
    for k in range(8): e("v_exp_f32 v%d, v%d" % (240+2*k, 240+2*k))
    e("v_exp_f32 v6, v6")
    e("v_mul_f32 v5, v240, v241")
    for k in range(1, 8): e("v_fmac_f32 v5, v%d, v%d" % (240+2*k, 241+2*k))
    e("""
    v_rcp_f32 v7, v5
    v_log_f32 v5, v5
    v_mul_f32 v6, v6, v7
    v_add_f32 v4, v4, v5
    v_mov_b32 v5, s52
    """)
    e.c("publish lse: wave 0, lanes 0..3: WS_LSE + br*4096 + (4g+n)*128 + b*16 + s*8")
    e("""
    s_cmp_lg_u32 s3, 0
    s_cbranch_scc1 L_lse_done
    s_lshl_b32 s7, s5, 12
    s_lshl_b32 s69, s4, 9
    s_add_u32 s7, s7, s69
    s_lshl_b32 s69, s6, 3
    s_add_u32 s7, s7, s69
    s_add_u32 s7, s7, %d
    v_lshlrev_b32 v7, 7, v1
    s_mov_b64 exec, 15
    buffer_store_dwordx2 v[4:5], v7, s[44:47], s7 offen sc1
    s_mov_b64 exec, -1
    """ % WS_LSE)
    e.label("L_lse_done")
    for k in range(32, 64): e("v_mul_f32 v%d, v%d, v6" % (k, k))
    for u in range(4):
        for m in range(4):
            s = 32 + 8*u + 2*m
            e("v_cvt_pk_bf16_f32 v%d, v%d, v%d" % (224 + 4*u + m, s, s+1))
    stamp("softmax done")
    def pv(u, after):
        for m in range(4):
            e("s_waitcnt vmcnt(%d)" % (after + 6 - 2*m))
            for ee in range(8):
                e("v_perm_b32 v%d, v%d, v%d, s%d" % (192 + 4*ee + m, VB[u] + 4*(2*m+1) + (ee>>1), VB[u] + 4*(2*m) + (ee>>1), 53 + (ee&1)))
        for ee in range(8):
            d = 32 + 4*ee; a = 192 + 4*ee; b = 224 + 4*u
            e("v_mfma_f32_16x16x32_bf16 v[%d:%d], v[%d:%d], v[%d:%d], %s" % (d, d+3, a, a+3, b, b+3, "0" if u == 0 else "v[%d:%d]" % (d, d+3)))
    pv(0, 24)
    stamp("pv0")
    e.c("wo loads (waves 0..3) into v[64:95]")
    e("s_cmp_ge_u32 s3, 4")
    e("s_cbranch_scc1 L_pv_nowo")
    def woloads():
        for j in range(4):
            for kap in range(8):
                m, x = kap >> 1, kap & 1
                so = (4*j + 2*(m&1) + x) * 8192
                if so == 0: sr = "0"
                else:
                    e("s_mov_b32 s60, %d" % so); sr = "s60"
                e("buffer_load_dword v%d, v12, s[40:43], %s offen offset:%d %s" % (64 + 8*j + kap, sr, (m>>1)*1024, NT))
    woloads()
    pv(1, 16+32); pv(2, 8+32); pv(3, 32)
    e("s_branch L_pv_done")
    e.label("L_pv_nowo")
    st = nst[0]
    pv(1, 16); pv(2, 8); pv(3, 0)
    e.label("L_pv_done")
    e.c("O partial -> LDS: L_OP + w*2112 + h*528 + (g4*8+e)*16, lanes n<4")
    e("""
    s_mul_i32 s7, s3, 2112
    v_mul_u32_u24 v4, 528, v3
    v_lshl_add_u32 v4, v2, 7, v4
    v_add_u32 v4, s7, v4
    s_mov_b32 exec_lo, 0x000f000f
    s_mov_b32 exec_hi, 0x000f000f
    s_nop 4
    """)
    for ee in range(8): e("ds_write_b128 v4, v[%d:%d] offset:%d" % (32+4*ee, 35+4*ee, L_OP + 16*ee))
    e("s_mov_b64 exec, -1")
    stamp("pv done")
    e.c("A-gather address (all waves): WS_O + br*256K + h*8K + w*1024 + l*16 -> s59 ; lse gather -> s61")
    e("""
    s_lshl_b32 s59, s5, 18
    s_lshl_b32 s69, s57, 13
    s_add_u32 s59, s59, s69
    s_lshl_b32 s69, s3, 10
    s_add_u32 s59, s59, s69
    s_add_u32 s59, s59, %d
    s_lshl_b32 s61, s5, 12
    s_lshl_b32 s69, s57, 7
    s_add_u32 s61, s61, s69
    s_add_u32 s61, s61, %d
    v_lshlrev_b32 v15, 5, v2
    s_waitcnt lgkmcnt(0)
    s_barrier
    s_cmp_ge_u32 s3, 2
    s_cbranch_scc1 L_o_published
    """ % (WS_O, WS_LSE))
    e.c("thread t<128: h = t>>5, ge = t&31")
    e("""
    v_lshrrev_b32 v5, 5, v0
    v_and_b32 v6, 31, v0
    v_mul_u32_u24 v4, 528, v5
    v_lshl_add_u32 v4, v6, 4, v4
    """)
    for w in range(8): e("ds_read_b128 v[%d:%d], v4 offset:%d" % (128+4*w, 131+4*w, L_OP + w*2112))
    e.c("store offset: WS_O + br*256K + (4g+h)*8K + u*512 + ge*16")
    e("""
    v_lshlrev_b32 v5, 13, v5
    v_lshl_add_u32 v5, v6, 4, v5
    s_lshl_b32 s7, s5, 18
    s_lshl_b32 s69, s4, 15
    s_add_u32 s7, s7, s69
    s_lshl_b32 s69, s6, 9
    s_add_u32 s7, s7, s69
    s_add_u32 s7, s7, %d
    v_mov_b32 v161, s52
    v_mov_b32 v163, s52
    """ % WS_O)
    e("s_waitcnt lgkmcnt(4)")
    for k in range(0, 8, 2): e("v_pk_add_f32 v[%d:%d], v[%d:%d], v[%d:%d]" % (128+k, 129+k, 128+k, 129+k, 136+k, 137+k))
    e("s_waitcnt lgkmcnt(0)")
    for k in range(0, 8, 2): e("v_pk_add_f32 v[%d:%d], v[%d:%d], v[%d:%d]" % (144+k, 145+k, 144+k, 145+k, 152+k, 153+k))
    for k in range(0, 8, 2): e("v_pk_add_f32 v[%d:%d], v[%d:%d], v[%d:%d]" % (128+k, 129+k, 128+k, 129+k, 144+k, 145+k))
    for k in range(0, 4, 2): e("v_pk_add_f32 v[%d:%d], v[%d:%d], v[%d:%d]" % (128+k, 129+k, 128+k, 129+k, 132+k, 133+k))
    e("""
    v_cvt_pk_bf16_f32 v160, v128, v129
    v_cvt_pk_bf16_f32 v162, v130, v131
    buffer_store_dwordx4 v[160:163], v5, s[44:47], s7 offen sc1
    """)
    e.label("L_o_published")
    stamp("o published")
    e.c("P3: poll A (1KB per wave) (+ lse for waves 0..3)")
    e("buffer_load_dwordx4 v[4:7], v9, s[44:47], s59 offen sc1")
    e("s_cmp_ge_u32 s3, 4")
    e("s_cbranch_scc1 L_p3_nowo")
    e("buffer_load_dwordx4 v[240:243], v15, s[44:47], s61 offen sc1")
    e("buffer_load_dwordx4 v[244:247], v15, s[44:47], s61 offen offset:16 sc1")
    e("s_waitcnt vmcnt(3)")
    for j in range(4):
        for par in range(2):
            for m in range(4):
                e("v_perm_b32 v%d, v%d, v%d, s%d" % (96 + 8*j + 4*par + m, 64+8*j+2*m+1, 64+8*j+2*m, 53+par))
    e("s_mov_b32 s7, 0x10000")
    e.label("L_lsepoll")
    e("""
    s_waitcnt vmcnt(0)
    v_xor_b32 v248, s52, v241
    v_bitop3_b32 v248, v248, v243, s52 bitop3:0xf6
    v_bitop3_b32 v248, v248, v245, s52 bitop3:0xf6
    v_bitop3_b32 v248, v248, v247, s52 bitop3:0xf6
    v_cmp_ne_u32 vcc, 0, v248
    s_cmp_eq_u64 vcc, 0
    s_cbranch_scc1 L_lseok
    s_sub_u32 s7, s7, 1
    s_cbranch_scc1 L_lseok
    buffer_load_dwordx4 v[240:243], v15, s[44:47], s61 offen sc1
    buffer_load_dwordx4 v[244:247], v15, s[44:47], s61 offen offset:16 sc1
    s_branch L_lsepoll
    """)
    e.label("L_lseok")
    e("""
    v_sub_f32 v248, v242, v240
    v_sub_f32 v249, v240, v242
    v_sub_f32 v250, v246, v244
    v_sub_f32 v251, v244, v246
    v_exp_f32 v248, v248
    v_exp_f32 v249, v249
    v_exp_f32 v250, v250
    v_exp_f32 v251, v251
    v_add_f32 v248, 1.0, v248
    v_add_f32 v249, 1.0, v249
    v_add_f32 v250, 1.0, v250
    v_add_f32 v251, 1.0, v251
    v_rcp_f32 v248, v248
    v_rcp_f32 v249, v249
    v_rcp_f32 v250, v250
    v_rcp_f32 v251, v251
    """)
    e.label("L_p3_nowo")
    e.c("A staging addr v14 = L_A + (2w + (l>>5))*272 + (l&31)*8 ; read addr v13 = r*272 + c*16")
    e("""
    v_lshrrev_b32 v14, 5, v1
    s_lshl_b32 s7, s3, 1
    v_add_u32 v14, s7, v14
    v_mul_u32_u24 v14, 272, v14
    v_and_b32 v13, 31, v1
    v_lshl_add_u32 v14, v13, 3, v14
    v_add_u32 v14, %d, v14
    v_mul_u32_u24 v13, 272, v3
    v_lshl_add_u32 v13, v2, 4, v13
    s_mov_b32 s7, 0x10000
    """ % L_A)
    e.label("L_apoll")
    e("""
    s_waitcnt vmcnt(0)
    v_cmp_ne_u32 vcc, s52, v5
    v_cmp_ne_u32 s[64:65], s52, v7
    s_or_b64 vcc, vcc, s[64:65]
    s_cbranch_scc0 L_aok
    s_sub_u32 s7, s7, 1
    s_cbranch_scc1 L_aok
    s_mov_b64 exec, vcc
    buffer_load_dwordx4 v[4:7], v9, s[44:47], s59 offen sc1
    s_branch L_apoll
    """)
    e.label("L_aok")
    e("""
    s_mov_b64 exec, -1
    ds_write2_b32 v14, v4, v6 offset0:0 offset1:1
    s_waitcnt lgkmcnt(0)
    s_barrier
    """)
    stamp("A staged")
    e("s_cmp_ge_u32 s3, 4")
    e("s_cbranch_scc1 L_p4")
    for j in range(4): e("ds_read_b128 v[%d:%d], v13 offset:%d" % (16+4*j, 19+4*j, L_A + j*64))
    e.c("PO store: WS_PO + br*1M + (2g4+bb)*128K + (cq*4+w)*8K + h*256 + n*16")
    e("""
    v_lshlrev_b32 v5, 18, v2
    v_lshl_add_u32 v5, v3, 4, v5
    s_lshl_b32 s7, s5, 20
    s_lshl_b32 s69, s58, 2
    s_add_u32 s69, s69, s3
    s_lshl_b32 s69, s69, 13
    s_add_u32 s7, s7, s69
    s_lshl_b32 s69, s57, 8
    s_add_u32 s7, s7, s69
    s_add_u32 s7, s7, %d
    s_add_u32 s69, s7, 0x20000
    v_mov_b32 v41, s52
    v_mov_b32 v43, s52
    v_mov_b32 v45, s52
    v_mov_b32 v47, s52
    """ % WS_PO)
    for j in range(4):
        e("s_waitcnt lgkmcnt(%d)" % (3-j))
        for par in range(2):
            d = 32 + 4*par; a = 16 + 4*j; b = 96 + 8*j + 4*par
            e("v_mfma_f32_16x16x32_bf16 v[%d:%d], v[%d:%d], v[%d:%d], %s" % (d, d+3, a, a+3, b, b+3, "0" if j == 0 else "v[%d:%d]" % (d, d+3)))
    e("""
    v_mul_f32 v40, v248, v32
    v_mul_f32 v44, v250, v34
    v_fmac_f32 v40, v249, v33
    v_fmac_f32 v44, v251, v35
    v_mul_f32 v42, v248, v36
    v_mul_f32 v46, v250, v38
    v_fmac_f32 v42, v249, v37
    v_fmac_f32 v46, v251, v39
    buffer_store_dwordx4 v[40:43], v5, s[44:47], s7 offen sc1
    buffer_store_dwordx4 v[44:47], v5, s[44:47], s69 offen sc1
    """)
    stamp("po published")
    e("s_branch L_fin")
    e.label("L_p4")
    e("s_cmp_lg_u32 s3, 7")
    e("s_cbranch_scc1 L_fin")
    e.c("P4 (wave 7): b4 = g, chunk32 = u")
    e("""
    s_lshl_b32 s59, s5, 20
    s_lshl_b32 s69, s4, 17
    s_add_u32 s59, s59, s69
    s_lshl_b32 s69, s6, 13
    s_add_u32 s59, s59, s69
    s_add_u32 s59, s59, %d
    s_add_u32 s61, s59, 4096
    s_mov_b32 s7, 0x10000
    """ % WS_PO)
    e.label("L_p4poll")
    for i in range(8):
        e("buffer_load_dwordx4 v[%d:%d], v9, s[44:47], s%d offen offset:%d sc1" % (128+4*i, 131+4*i, 59 if i < 4 else 61, (i&3)*1024))
    for i in range(8):
        e("s_waitcnt vmcnt(%d)" % (7-i))
        if i == 0: e("v_xor_b32 v4, s52, v129")
        else: e("v_bitop3_b32 v4, v4, v%d, s52 bitop3:0xf6" % (129+4*i))
        e("v_bitop3_b32 v4, v4, v%d, s52 bitop3:0xf6" % (131+4*i))
    e("""
    v_cmp_ne_u32 vcc, 0, v4
    s_cmp_eq_u64 vcc, 0
    s_cbranch_scc1 L_p4ok
    s_mov_b64 exec, vcc
    s_sub_u32 s7, s7, 1
    s_cbranch_scc0 L_p4poll
    """)
    e.label("L_p4ok")
    e("s_mov_b64 exec, -1")
    for i in range(4):
        e("v_add_f32 v%d, v%d, v%d" % (128+4*i, 128+4*i, 144+4*i))
        e("v_add_f32 v%d, v%d, v%d" % (130+4*i, 130+4*i, 146+4*i))
    for i in range(2):
        e("v_add_f32 v%d, v%d, v%d" % (128+4*i, 128+4*i, 136+4*i))
        e("v_add_f32 v%d, v%d, v%d" % (130+4*i, 130+4*i, 138+4*i))
    e("""
    v_add_f32 v4, v128, v132
    v_add_f32 v5, v130, v134
    v_mov_b32 v6, v4
    v_mov_b32 v7, v5
    v_permlane32_swap_b32 v4, v6
    v_permlane32_swap_b32 v5, v7
    v_add_f32 v4, v4, v6
    v_add_f32 v5, v5, v7
    v_mov_b32 v6, v4
    v_mov_b32 v7, v5
    v_permlane16_swap_b32 v4, v6
    v_permlane16_swap_b32 v5, v7
    v_add_f32 v4, v4, v6
    v_add_f32 v5, v5, v7
    v_cvt_pk_bf16_f32 v4, v4, v5
    v_lshlrev_b32 v5, 2, v3
    s_lshl_b32 s7, s4, 11
    s_lshl_b32 s69, s5, 10
    s_add_u32 s7, s7, s69
    s_lshl_b32 s69, s6, 6
    s_add_u32 s7, s7, s69
    s_mov_b64 exec, 0xffff
    buffer_store_dword v4, v5, s[48:51], s7 offen
    s_and_b32 s69, s2, 127
    s_cmp_lg_u32 s69, 0
    s_cbranch_scc1 L_fin2
    s_mov_b64 exec, 1
    v_mov_b32 v4, s52
    s_lshl_b32 s61, s5, 8
    buffer_store_dword v4, off, s[44:47], s61 sc1
    """)
    e.label("L_fin2")
    e("s_mov_b64 exec, -1")
    stamp("p4 done")
    e.label("L_fin")
    if stamps:
        e("s_waitcnt vmcnt(0)")
        e("s_memrealtime s[100:101]")
        e("s_waitcnt lgkmcnt(0)")
        for k in range(32): e("v_writelane_b32 v4, s%d, %d" % (70+k, k))
        e("""
        s_lshl_b32 s7, s2, 4
        s_add_u32 s7, s7, s3
        s_lshl_b32 s7, s7, 7
        s_add_u32 s7, s7, %d
        v_lshlrev_b32 v5, 2, v1
        s_mov_b32 exec_hi, 0
        buffer_store_dword v4, v5, s[44:47], s7 offen
        """ % WS_STAMP)
    e.label("L_end")
    e("s_endpgm")
    e.raw('.section .rodata,"a"\n.p2align 6\n.amdhsa_kernel %s_kernel\n  .amdhsa_next_free_vgpr 256\n  .amdhsa_next_free_sgpr 102\n  .amdhsa_accum_offset 256\n  .amdhsa_group_segment_fixed_size 0\n  .amdhsa_kernarg_size 104\n  .amdhsa_user_sgpr_count 2\n  .amdhsa_user_sgpr_kernarg_segment_ptr 1\n  .amdhsa_system_sgpr_workgroup_id_x 1\n.end_amdhsa_kernel' % NAME)
    open(out, "w").write(e.text())
    return build(out)

if __name__ == "__main__":
    gen("k_plain.s"); gen("k_stamp.s", stamps=True)
    print("LDS", L_END)
```

```python
import sys, struct
from asmlib import *
from emit import Em
def f32bits(x): return struct.unpack("<I", struct.pack("<f", x))[0]
WS_Q   = 0x1000
WS_LSE = 0x50000
WS_O   = 0x60000
WS_PO  = 0xE0000
WS_END = 0x120000
WS_STAMP = 256 << 20
L_QS = 0
L_ML = 1024
L_CNT = 1280
L_R3 = 1536
L_OP = L_R3 + 8192
L_P1 = L_OP
L_END = L_OP + 8*2112

def gen(out, stamps=False, BUD=48, QP=20, NT="nt", QW=3, MLS=8, WOPOS=None, LOCAL=True, OBAR=True, OSF="", NOA=False, SLP=0, PF3=True, PF3W=12, WOMODE=0, WOPRE=8, KD=True, ROT=0, WOF="", WQ0=1, WQR=2, NOTAIL=False, PL=28, P1R=0, BURST=True, K0=3, WQF=""):
    e0 = Em()
    KVSZ = 262144 if ROT else 7*32768+4096
    class F:
        def __call__(self, t):
            e0(t.replace("WOFFS", "s_lshl_b32 s96, s3, 12" if ROT else "s_lshl_b32 s7, s3, 12\ns_add_u32 s68, s68, s7"))
        def __getattr__(self, n): return getattr(e0, n)
    e = F()
    nst = [0]
    def stamp(name=""):
        if not stamps: return
        k = nst[0]; nst[0] += 1
        assert k < 13
        e("s_memrealtime s[%d:%d] ; stamp %d %s" % (70+2*k, 71+2*k, k, name))
    e.raw(HEADER + "; Generated by a hand-written Python generator (dev/gen8.py)\n; @launch grid=(256,1,1) block=(512,1,1) lds=%d" % L_END)
    e.raw('.amdgcn_target "amdgcn-amd-amdhsa--gfx950"\n.text\n.globl %s_kernel\n.p2align 8\n.type %s_kernel,@function\n%s_kernel:' % (NAME,NAME,NAME))
    if stamps:
        for k in range(16): e("s_mov_b64 s[%d:%d], 0" % (70+2*k, 71+2*k))
    stamp("start")
    e("s_cmp_ge_u32 s2, 256")
    e("s_cbranch_scc1 L_end")
    e.c("decode: g = id&7 (s4), br = id>>7 (s5), u = (id>>3)&15 (s6), wave s3, b = s66, s = s67")
    e("""
    s_lshr_b32 s5, s2, 7
    s_mul_i32 s7, s5, 40
    s_add_u32 s64, s0, s7
    s_addc_u32 s65, s1, 0
    s_load_dwordx8 s[8:15], s[64:65], 0
    s_load_dwordx2 s[22:23], s[0:1], 96
    s_load_dwordx2 s[16:17], s[64:65], 32
    s_load_dwordx2 s[18:19], s[0:1], 80
    s_and_b32 s4, s2, 7
    s_bfe_u32 s6, s2, 0x40003
    v_lshrrev_b32 v2, 6, v0
    v_and_b32 v1, 63, v0
    v_readfirstlane_b32 s3, v2
    v_lshrrev_b32 v2, 4, v1
    v_and_b32 v3, 15, v1
    """)
    e.c("v8 = K lane off (r&3)*256+((r>>2)*4+c)*16, v9 = lane*16, v10 = wq lane off, v11 = x lane off")
    e("""
    v_and_b32 v4, 3, v3
    %s
    v_lshlrev_b32 v9, 4, v1
    v_lshlrev_b32 v4, 16, v2
    v_lshl_add_u32 v10, v3, 2, v4
    v_lshlrev_b32 v4, 10, v3
    v_lshl_add_u32 v11, v2, 4, v4
    s_lshr_b32 s66, s6, 1
    s_and_b32 s67, s6, 1
    s_lshl_b32 s68, s66, 3
    s_add_u32 s68, s68, s4
    s_lshl_b32 s68, s68, 21
    s_lshl_b32 s21, s67, 18
    s_add_u32 s68, s68, s21
    WOFFS
    s_add_u32 s68, s68, %d
    s_mov_b32 s35, 0x20000
    s_mov_b32 s34, %d
    s_lshl_b32 s62, s4, 4
    s_add_u32 s62, s62, s6
    s_lshl_b32 s63, s3, 19
    s_lshl_b32 s69, s62, 6
    s_add_u32 s63, s63, s69
    s_mov_b32 s31, 0x20000
    s_mov_b32 s30, %d
    s_waitcnt lgkmcnt(0)
    s_add_u32 s32, s10, s68
    s_addc_u32 s33, s11, 0
    """ % ("v_and_b32 v5, 12, v3\nv_lshlrev_b32 v5, 6, v5\nv_lshl_add_u32 v5, v2, 6, v5\nv_lshl_add_u32 v8, v4, 4, v5" if KD else "v_and_b32 v5, 12, v3\nv_add_u32 v5, v5, v2\nv_lshlrev_b32 v4, 8, v4\nv_lshl_add_u32 v8, v5, 4, v4", 6144*256, KVSZ, 63*8192+64))
    wts = []
    def vm(text, w):
        e(text); wts.append(w); return len(wts) - 1
    lastwait = [10**9]
    def need(idx):
        n = len(wts) - 1 - idx
        assert 0 <= n <= 63
        e("s_waitcnt vmcnt(%d)" % n)
    def pace(w):
        tot = w; n = 0
        for x in reversed(wts):
            if tot + x > BUD: break
            tot += x; n += 1
        if n < len(wts): e("s_waitcnt vmcnt(%d)" % min(n, 63))
    lbl = [0]
    def cnt_add(k):
        e("s_mov_b64 exec, 1\nds_add_u32 v28, v29 offset:%d\ns_mov_b64 exec, -1" % (L_CNT + 4*k))
    def cnt_wait(k, n=8):
        lbl[0] += 1
        e.label("L_cw%d" % lbl[0])
        e("ds_read_b32 v30, v28 offset:%d\ns_waitcnt lgkmcnt(0)\nv_readfirstlane_b32 s7, v30\ns_cmp_lt_u32 s7, %d\ns_cbranch_scc1 L_cw%d" % (L_CNT + 4*k, n, lbl[0]))
    cur = [None]
    def soff(val):
        if val == 0: return "0"
        if cur[0] != val:
            e("s_mov_b32 s56, %d" % val); cur[0] = val
        return "s56"
    def kvoff(t, lam):
        if not ROT: return soff(t*32768)
        j = {1: 2*lam + t, 2: lam + 4*(t&1) + (t>>1), 3: t}[ROT] & 7
        e("s_add_u32 s56, s96, %d\ns_and_b32 s56, s56, 0x7000" % (j*4096))
        if t: e("s_add_u32 s56, s56, %d" % (t*32768))
        return "s56"
    VB = [64, 96, 128, 160]
    idx = {}
    flags = {}
    seq = []
    if BURST: WQ0, WQR = 0, 18
    wq = [("q", n) for n in range(16)] + [("x", 0), ("x", 1)]
    kk = [("k", n) for n in range(32)]
    seq += kk[:WQ0]; kk = kk[WQ0:]
    while wq:
        seq += wq[:WQR]; wq = wq[WQR:]
        if wq: seq.append(kk.pop(0))
    seq += kk + [("v", n) for n in range(32)]
    if WOPOS is not None:
        p = seq.index(("k", WOPOS)) if WOPOS < 32 else (seq.index(("v", WOPOS-32)) if WOPOS < 64 else len(seq))
        seq[p:p] = [("w", n) for n in range(16)]
    W = dict(k=8, v=8, w=4, q=4, x=4)
    pos = [0]
    def issue_next():
        kind, n = seq[pos[0]]; pos[0] += 1
        w = W[kind]
        if kind == "k":
            t, lam = divmod(n, 4)
            i = vm("buffer_load_dwordx4 v[%d:%d], v8, s[32:35], %s offen offset:%d %s" % (128+4*n, 131+4*n, kvoff(t, lam), lam*1024, NT), w)
        elif kind == "v":
            u, i = divmod(n, 8)
            assert n < 16 or flags.get("qk"), "V load into K regs before QK done"
            assert flags.get("p1"), "V load before P1 done"
            r = VB[u] + 4*i
            i = vm("buffer_load_dwordx4 v[%d:%d], v9, s[36:39], %s offen offset:%d %s" % (r, r+3, kvoff(2*u + (i>>2), i&3), (i&3)*1024, NT), w)
        elif kind == "w":
            assert flags.get("pv0"), "wo load before V0 consumed"
            jj, kap = divmod(n, 8)
            m, x = kap >> 1, kap & 1
            row = 32*jj + 8*(2*(m&1) + x) + (m>>1)
            e("s_xor_b32 s61, s66, %d" % (row*1024))
            i = vm("buffer_load_dword v%d, v12, s[40:43], s61 offen %s" % (64 + n, WOF), w)
        elif kind == "q":
            jj, k = divmod(n, 8)
            e("s_xor_b32 s60, s21, %d" % ((32*jj + k) * 8192))
            i = vm("buffer_load_dword v%d, v10, s[28:31], s60 offen %s" % (64 + n, WQF), w)
        elif kind == "x":
            e("s_xor_b32 s60, s20, %d" % (64*n))
            i = vm("buffer_load_dwordx4 v[%d:%d], v11, s[24:27], s60 offen" % (80+4*n, 83+4*n), w)
        idx[(kind, n)] = i
    def slot(wait=True):
        if pos[0] >= len(seq): return
        if wait: pace(W[seq[pos[0]][0]])
        issue_next()
    def landed(key):
        if key not in idx: return False
        return sum(wts[idx[key]:]) + 8 > BUD
    for _ in range(WQ0): issue_next()
    e("""
    s_add_u32 s28, s14, s63
    s_addc_u32 s29, s15, 0
    """)
    if BURST:
        e("s_lshl_b32 s61, s5, 8\ns_load_dword s52, s[22:23], s61")
        e.c("WS SRD; o slot address (s20o = s59 temp) ; waves 2,3 clear own o slot with the sentinel")
        e("""
        s_mov_b32 s44, s22
        s_mov_b32 s45, s23
        s_mov_b32 s46, %d
        s_mov_b32 s47, 0x20000
        v_bfe_u32 v22, v0, 4, 3
        v_lshlrev_b32 v22, 11, v22
        v_lshl_add_u32 v22, v3, 3, v22
        s_lshl_b32 s59, s5, 17
        s_lshl_b32 s7, s4, 14
        s_add_u32 s59, s59, s7
        s_lshl_b32 s7, s6, 7
        s_add_u32 s59, s59, s7
        s_add_u32 s59, s59, %d
        s_and_b32 s7, s3, 6
        s_cmp_lg_u32 s7, 2
        s_cbranch_scc1 L_noclear
        v_mov_b32 v24, -1
        v_mov_b32 v25, -1
        buffer_store_dwordx2 v[24:25], v22, s[44:47], s59 offen sc1
        L_noclear:
        """ % ((WS_STAMP + 256*16*128) if stamps else WS_END, WS_O))
        if PF3:
            e.c("cooperative L2 prefetch of the slow line class of this group's wq slab: row = 32u + 4w + (l&3)")
            e("""
            s_mov_b32 s24, s14
            s_mov_b32 s25, s15
            s_mov_b32 s26, 0x400000
            s_mov_b32 s27, 0x20000
            s_lshl_b32 s60, s6, 18
            s_lshl_b32 s7, s3, 15
            s_add_u32 s60, s60, s7
            s_lshl_b32 s7, s4, 10
            s_add_u32 s60, s60, s7
            v_and_b32 v4, 3, v1
            v_lshlrev_b32 v4, 13, v4
            """)
            vm("buffer_load_dword v13, v4, s[24:27], s60 offen offset:384", 4)
        for _ in range(16): issue_next()
    else:
        for _ in range(WQR + 1): slot()
    e.c("rest of the setup")
    e("""
    s_lshl_b32 s61, s5, 8
    %s
    s_lshl_b32 s69, s3, 7
    s_add_u32 s24, s8, s69
    s_addc_u32 s25, s9, 0
    s_sub_u32 s26, 8192, s69
    s_mov_b32 s27, 0x20000
    s_lshr_b32 s20, s21, 12
    v_mov_b32 v28, 0
    v_mov_b32 v29, 0
    v_mov_b32 v30, 0
    v_mov_b32 v31, 0
    ds_write_b128 v28, v[28:31] offset:%d
    """ % ("" if BURST else "s_load_dword s52, s[22:23], s61", L_CNT))
    if BURST:
        issue_next(); issue_next()
        e("s_waitcnt lgkmcnt(0)\ns_barrier")
        for _ in range(K0): issue_next()
    else:
        while sum(wts) + W[seq[pos[0]][0]] <= BUD: issue_next()
    e("""
    s_add_u32 s36, s12, s68
    s_addc_u32 s37, s13, 0
    s_mov_b32 s38, %d
    s_mov_b32 s39, 0x20000
    s_mov_b32 s48, s18
    s_mov_b32 s49, s19
    s_mov_b32 s50, 16384
    s_mov_b32 s51, 0x20000
    s_mov_b32 s53, 0x05040100
    s_mov_b32 s54, 0x07060302
    s_mov_b32 s55, 0x%08x
    """ % (KVSZ, f32bits(128**-0.5 * 1.4426950408889634)))
    e.c("WO SRD: rows g*512 + w*64 .., cols 32u.. ; v12 = c*1024 + r*4 ; s57 = xcc id")
    e("""
    s_lshl_b32 s69, s4, 19
    s_lshl_b32 s7, s3, 16
    s_add_u32 s69, s69, s7
    s_lshl_b32 s7, s6, 6
    s_add_u32 s69, s69, s7
    s_add_u32 s40, s16, s69
    s_addc_u32 s41, s17, 0
    s_mov_b32 s42, %d
    s_mov_b32 s43, 0x20000
    s_getreg_b32 s57, hwreg(HW_REG_XCC_ID, 0, 4)
    """ % (63*1024+64))
    e("""
    v_lshlrev_b32 v5, 11, v2
    v_lshl_add_u32 v12, v3, 2, v5
    s_lshl_b32 s7, s3, 11
    s_add_u32 s7, s7, %d
    v_lshlrev_b32 v4, 7, v3
    v_lshl_add_u32 v14, v2, 5, v4
    v_add_u32 v14, s7, v14
    s_waitcnt lgkmcnt(0)
    %s
    v_mov_b32 v29, 1
    s_add_u32 s52, s52, 0x9E3779B9
    """ % (L_P1, "" if BURST else "s_barrier"))
    if BURST:
        need(idx[("x", 1)])
        for _ in range(BUD//8 - K0): issue_next()
    else:
        while not landed(("x", 1)): slot()
        need(idx[("x", 1)])
        issue_next()
    stamp("wq landed")
    for jj in range(2):
        for par in range(2):
            for m in range(4):
                e("v_perm_b32 v%d, v%d, v%d, s%d" % (88 + 8*jj + 4*par + m, 64+8*jj+2*m+1, 64+8*jj+2*m, 53+par))
    for jj in range(2):
        for par in range(2):
            d = 104 + 4*par; a = 88 + 8*jj + 4*par; b = 80 + 4*jj
            e("v_mfma_f32_16x16x32_bf16 v[%d:%d], v[%d:%d], v[%d:%d], %s" % (d, d+3, a, a+3, b, b+3, "0" if jj == 0 else "v[%d:%d]" % (d, d+3)))
    for i in range(4):
        e("ds_write2_b32 v14, v%d, v%d offset0:%d offset1:%d" % (104+i, 108+i, 2*i, 2*i+1))
    cnt_add(0)
    for _ in range(P1R): slot()
    e.c("waves 2,3: reduce + publish q")
    e("s_and_b32 s7, s3, 6\ns_cmp_lg_u32 s7, 2")
    e("s_cbranch_scc1 L_q_published")
    cnt_wait(0)
    e("v_and_b32 v6, 127, v0\nv_lshlrev_b32 v4, 3, v6")
    for w in range(8):
        e("ds_read_b64 v[%d:%d], v4 offset:%d" % (88+2*w, 89+2*w, L_P1 + w*2048))
    e("""
    v_lshrrev_b32 v5, 4, v6
    v_lshlrev_b32 v5, 14, v5
    v_lshl_add_u32 v5, v3, 3, v5
    s_lshl_b32 s7, s5, 17
    s_lshl_b32 s69, s62, 7
    s_add_u32 s7, s7, s69
    s_add_u32 s7, s7, %d
    s_waitcnt lgkmcnt(0)
    """ % WS_Q)
    for w in range(4): e("v_pk_add_f32 v[%d:%d], v[%d:%d], v[%d:%d]" % (88+2*w, 89+2*w, 88+2*w, 89+2*w, 96+2*w, 97+2*w))
    for w in range(2): e("v_pk_add_f32 v[%d:%d], v[%d:%d], v[%d:%d]" % (88+2*w, 89+2*w, 88+2*w, 89+2*w, 92+2*w, 93+2*w))
    e("v_pk_add_f32 v[88:89], v[88:89], v[90:91]")
    e("v_cvt_pk_bf16_f32 v6, v88, v89")
    e("s_xor_b32 s69, s52, s57\nv_mov_b32 v7, s69")
    e("buffer_store_dwordx2 v[6:7], v5, s[44:47], s7 offen sc1")
    e.label("L_q_published")
    flags["p1"] = True
    stamp("q published")
    e.c("q gather addr s59 + v15; staging addr v14")
    e("""
    s_lshl_b32 s59, s5, 17
    s_lshl_b32 s69, s66, 14
    s_add_u32 s59, s59, s69
    s_lshl_b32 s69, s4, 11
    s_add_u32 s59, s59, s69
    s_lshl_b32 s69, s3, 8
    s_add_u32 s59, s59, s69
    s_add_u32 s59, s59, %d
    v_lshlrev_b32 v15, 4, v3
    s_lshl_b32 s7, s3, 7
    s_add_u32 s7, s7, %d
    v_lshlrev_b32 v14, 3, v3
    v_add_u32 v14, s7, v14
    """ % (WS_Q, L_QS))
    while ("k", QP) not in idx: slot()
    idx["qp"] = vm("buffer_load_dwordx4 v[4:7], v15, s[44:47], s59 offen sc1", 0)
    while not landed("qp"): slot()
    need(idx["qp"])
    issue_next()
    e("s_mov_b32 s7, 0x10000")
    e.label("L_qpoll")
    e("""
    v_xor_b32 v5, s52, v5
    v_xor_b32 v7, s52, v7
    v_or_b32 v30, v5, v7
    v_cmp_lt_u32 vcc, 15, v30
    s_cmp_eq_u64 vcc, 0
    s_cbranch_scc1 L_qok
    s_sub_u32 s7, s7, 1
    s_cbranch_scc1 L_qok
    buffer_load_dwordx4 v[4:7], v15, s[44:47], s59 offen sc1
    s_waitcnt vmcnt(0)
    s_branch L_qpoll
    """)
    e.label("L_qok")
    stamp("q polled")
    e("""
    ds_write2_b32 v14, v4, v6 offset0:0 offset1:1
    v_cmp_ne_u32 vcc, s57, v5
    v_cmp_ne_u32 s[64:65], s57, v7
    s_or_b64 vcc, vcc, s[64:65]
    s_cselect_b32 s7, 0x101, 1
    v_mov_b32 v30, s7
    s_mov_b64 exec, 1
    ds_add_u32 v28, v30 offset:%d
    s_mov_b64 exec, -1
    """ % (L_CNT + 4))
    e.c("q operand read addr: h*256 + (4v+c)*16 ; v14 = ML write addr (n&3)*64 + w*8")
    e("""
    v_and_b32 v4, 3, v3
    v_lshlrev_b32 v14, 6, v4
    s_lshl_b32 s7, s3, 3
    v_add_u32 v14, s7, v14
    """)
    for _ in range(QW): slot()
    e("""
    L_cwq:
    ds_read_b32 v30, v28 offset:%d
    s_waitcnt lgkmcnt(0)
    v_readfirstlane_b32 s58, v30
    s_and_b32 s7, s58, 0xff
    s_cmp_lt_u32 s7, 8
    s_cbranch_scc1 L_cwq
    """ % (L_CNT + 4))
    if KD:
        e("v_and_b32 v4, 3, v3\nv_lshlrev_b32 v4, 8, v4\nv_lshl_add_u32 v4, v2, 6, v4\nv_and_b32 v5, 12, v3\nv_lshl_add_u32 v4, v5, 2, v4")
        e("ds_read_b128 v[16:19], v4 offset:%d" % L_QS)
    else:
        e("ds_read_b128 v[16:19], v8 offset:%d" % L_QS)
    e("s_waitcnt lgkmcnt(0)")
    DT0 = 240
    def dbase(t): return 48 if t == 0 else 128 + 16*(t-1)
    def qk_mfma(t):
        db = dbase(t)
        need(idx[("k", 4*t+3)])
        for lam in range(4):
            a = 128 + 16*t + 4*lam
            e("v_mfma_f32_16x16x32_bf16 v[%d:%d], v[%d:%d], v[16:19], 0" % (db+4*lam, db+4*lam+3, a, a+3))
    def qk_red(t):
        db = dbase(t)
        R = lambda x, i: db + 4*i + x
        if KD:
            for i in range(4): e("v_add_f32_dpp v%d, v%d, v%d row_shl:4 row_mask:0xf bank_mask:0xf bound_ctrl:0" % (R(0,i), R(1,i), R(0,i)))
            for i in range(4): e("v_add_f32_dpp v%d, v%d, v%d row_shl:8 row_mask:0xf bank_mask:0xf bound_ctrl:0" % (R(0,i), R(2,i), R(0,i)))
            for i in range(4): e("v_add_f32_dpp v%d, v%d, v%d row_shl:12 row_mask:0xf bank_mask:0xf bound_ctrl:0" % (32+4*t+i, R(3,i), R(0,i)))
            return
        for i in range(4): e("v_permlane32_swap_b32 v%d, v%d" % (R(0,i), R(2,i)))
        for i in range(4): e("v_permlane32_swap_b32 v%d, v%d" % (R(1,i), R(3,i)))
        for i in range(4): e("v_add_f32_dpp v%d, v%d, v%d row_shl:8 row_mask:0xf bank_mask:0xf bound_ctrl:0" % (R(0,i), R(2,i), R(0,i)))
        for i in range(4): e("v_add_f32_dpp v%d, v%d, v%d row_shl:8 row_mask:0xf bank_mask:0xf bound_ctrl:0" % (R(1,i), R(3,i), R(1,i)))
        for i in range(4): e("v_permlane16_swap_b32 v%d, v%d" % (R(0,i), R(1,i)))
        for i in range(4): e("v_add_f32_dpp v%d, v%d, v%d row_shl:4 row_mask:0xf bank_mask:0xf bound_ctrl:0" % (32+4*t+i, R(1,i), R(0,i)))
    qk_mfma(0)
    for t in range(8):
        if t + 1 < 8:
            did = False
            while not landed(("k", 4*(t+1)+3)): slot(); did = True
            qk_mfma(t+1)
            if did: slot(False)
            elif t % 3 == 2: slot()
        qk_red(t)
    flags["qk"] = True
    stamp("qk done")
    e.c("softmax (per-wave max)")
    e("v_max3_f32 v4, v32, v33, v34")
    for k in range(35, 63, 2): e("v_max3_f32 v4, v4, v%d, v%d" % (k, k+1))
    e("v_max_f32 v4, v4, v63")
    e("""
    v_mov_b32 v5, v4
    v_permlane32_swap_b32 v4, v5
    v_max_f32 v4, v4, v5
    v_mov_b32 v5, v4
    v_permlane16_swap_b32 v4, v5
    v_max_f32 v4, v4, v5
    v_mul_f32 v6, s55, v4
    """)
    for k in range(32, 64): e("v_fma_f32 v%d, v%d, s55, -v6" % (k, k))
    for k in range(32, 64): e("v_exp_f32 v%d, v%d" % (k, k))
    slot()
    e("v_add_f32 v5, v32, v33")
    e("v_add_f32 v7, v34, v35")
    for k in range(36, 64, 2):
        e("v_add_f32 v5, v5, v%d" % k); e("v_add_f32 v7, v7, v%d" % (k+1))
    e("""
    v_add_f32 v5, v5, v7
    v_mov_b32 v7, v5
    v_permlane32_swap_b32 v5, v7
    v_add_f32 v5, v5, v7
    v_mov_b32 v7, v5
    v_permlane16_swap_b32 v5, v7
    v_add_f32 v7, v5, v7
    s_mov_b64 exec, 15
    ds_write_b64 v14, v[6:7] offset:%d
    """ % L_ML)
    cnt_add(2)
    for u in range(4):
        for m in range(4):
            s = 32 + 8*u + 2*m
            e("v_cvt_pk_bf16_f32 v%d, v%d, v%d" % (224 + 4*u + m, s, s+1))
    slot()
    e.c("tail addresses: v20 O partial write; s59+v14 A gather; v15 R3 write; v21 o reduce read; v22+s20 o store")
    e("""
    s_mul_i32 s7, s3, 2112
    s_add_u32 s7, s7, %d
    v_mul_u32_u24 v20, 528, v3
    v_lshl_add_u32 v20, v2, 7, v20
    v_add_u32 v20, s7, v20
    s_lshl_b32 s20, s5, 17
    s_lshl_b32 s69, s4, 14
    s_add_u32 s20, s20, s69
    s_add_u32 s20, s20, %d
    s_lshl_b32 s69, s3, 11
    s_add_u32 s59, s20, s69
    s_and_b32 s66, s6, 1
    s_lshl_b32 s69, s66, 6
    s_add_u32 s59, s59, s69
    s_xor_b32 s68, s59, 64
    s_lshl_b32 s66, s66, 15
    s_lshl_b32 s69, s6, 7
    s_add_u32 s20, s20, s69
    v_lshlrev_b32 v14, 7, v3
    v_lshl_add_u32 v14, v2, 4, v14
    s_lshl_b32 s7, s3, 10
    s_add_u32 s7, s7, %d
    v_add_u32 v15, s7, v9
    v_lshrrev_b32 v5, 5, v0
    v_and_b32 v6, 31, v0
    v_mul_u32_u24 v21, 528, v5
    v_lshl_add_u32 v21, v6, 4, v21
    """ % (L_OP, WS_O, L_R3))
    e.c("PO store: s63 = WS_PO + br*128K + u*8K + g*128 ; v23 = (l>>3)*1024 + (l&7)*16 ; P4 poll s60 = .. + g*1024")
    e("""
    v_lshrrev_b32 v23, 3, v1
    v_lshlrev_b32 v23, 10, v23
    v_and_b32 v5, 7, v1
    v_lshl_add_u32 v23, v5, 4, v23
    s_lshl_b32 s63, s5, 17
    s_lshl_b32 s69, s6, 13
    s_add_u32 s63, s63, s69
    s_add_u32 s63, s63, %d
    s_lshl_b32 s69, s4, 10
    s_add_u32 s60, s63, s69
    s_lshl_b32 s69, s4, 7
    s_add_u32 s63, s63, s69
    """ % WS_PO)
    e.c("out store: s21 = (g>>1)*4096 + br*1024 + u*64 + (g&1)*32 ; v10 = ((l>>3)&1)*2048 + (l&7)*4")
    e("""
    v_and_b32 v10, 32, v1
    v_lshlrev_b32 v10, 6, v10
    v_lshl_add_u32 v10, v5, 2, v10
    v_and_b32 v5, 1, v2
    v_lshl_add_u32 v10, v5, 1, v10
    s_lshr_b32 s21, s4, 1
    s_lshl_b32 s21, s21, 12
    s_lshl_b32 s69, s5, 10
    s_add_u32 s21, s21, s69
    s_lshl_b32 s69, s6, 6
    s_add_u32 s21, s21, s69
    s_and_b32 s69, s4, 1
    s_lshl_b32 s69, s69, 5
    s_add_u32 s21, s21, s69
    """)
    FR = [16, 17, 18, 19, 252, 253, 254, 255]
    def mlblock():
        e.c("waves 0,1: factors f_w for head tid>>5; publish lse (v[240:241] keeps own lse)")
        e("s_cmp_ge_u32 s3, 2")
        e("s_cbranch_scc1 L_ml_done")
        cnt_wait(2)
        e("v_lshrrev_b32 v4, 5, v0\nv_lshlrev_b32 v5, 6, v4")
        for k in range(4): e("ds_read_b128 v[%d:%d], v5 offset:%d" % (240+4*k, 243+4*k, L_ML + 16*k))
        e("""
        s_lshl_b32 s7, s2, 7
        s_add_u32 s7, s7, %d
        s_xor_b32 s67, s7, 0x400
        v_lshlrev_b32 v7, 3, v4
        s_waitcnt lgkmcnt(0)
        v_max3_f32 v4, v240, v242, v244
        v_max3_f32 v4, v4, v246, v248
        v_max3_f32 v4, v4, v250, v252
        v_max_f32 v4, v4, v254
        """ % WS_LSE)
        for k in range(8): e("v_sub_f32 v%d, v%d, v4" % (240+2*k, 240+2*k))
        for k in range(8): e("v_exp_f32 v%d, v%d" % (240+2*k, 240+2*k))
        e("v_mul_f32 v5, v240, v241")
        for k in range(1, 8): e("v_fmac_f32 v5, v%d, v%d" % (240+2*k, 241+2*k))
        e("""
        v_rcp_f32 v6, v5
        v_log_f32 v5, v5
        """)
        for k in (7, 6, 5, 4, 3, 2, 1, 0): e("v_mul_f32 v%d, v%d, v6" % (FR[k], 240+2*k))
        e("""
        v_add_f32 v240, v4, v5
        v_mov_b32 v241, s52
        v_mov_b32 v244, v7
        s_mov_b32 exec_lo, 1
        s_mov_b32 exec_hi, 1
        buffer_store_dwordx2 v[240:241], v7, s[44:47], s7 offen sc1
        s_mov_b64 exec, -1
        """)
        e.label("L_ml_done")
    def plissue():
        assert ("v", PL+1) not in idx
        e.c("waves 0,1: fetch partner lse")
        e("""
        s_cmp_ge_u32 s3, 2
        s_cbranch_scc1 L_pl_done
        buffer_load_dwordx2 v[242:243], v244, s[44:47], s67 offen sc1
        """)
        e.label("L_pl_done")
    for u in range(4):
        for m in range(4):
            last = 8*u + 2*m + 1
            did = False
            while pos[0] < len(seq) and not landed(("v", last)): slot(); did = True
            if PF3W is not None and last == PF3W + 1:
                e("""
                s_mov_b32 s24, s16
                s_mov_b32 s25, s17
                s_mov_b32 s26, 0x400000
                s_mov_b32 s27, 0x20000
                s_lshl_b32 s61, s62, 15
                s_lshl_b32 s7, s3, 12
                s_add_u32 s61, s61, s7
                v_and_b32 v4, 3, v1
                v_lshlrev_b32 v4, 10, v4
                """)
                vm("buffer_load_dword v13, v4, s[24:27], s61 offen offset:384", 4)
            if last == MLS + 1: mlblock()
            if last == PL - 7: plissue()
            need(idx[("v", last)])
            if last == 31 and WOPOS is None:
                seq.extend([("w", n) for n in range(16)])
                for _ in range(16 if WOMODE == 0 else WOPRE): slot(False)
            elif last == 31: pass
            elif did: slot(False)
            for ee in range(8):
                e("v_perm_b32 v%d, v%d, v%d, s%d" % (192 + 4*ee + m, VB[u] + 4*(2*m+1) + (ee>>1), VB[u] + 4*(2*m) + (ee>>1), 53 + (ee&1)))
            if last == PL + 1:
                e.c("waves 0,1: partner weight -> scale factors")
                e("""
                s_cmp_ge_u32 s3, 2
                s_cbranch_scc1 L_pw_done
                s_mov_b32 s7, 0x10000
                L_plpoll:
                v_cmp_ne_u32 vcc, s52, v243
                s_cmp_eq_u64 vcc, 0
                s_cbranch_scc1 L_plok
                s_sub_u32 s7, s7, 1
                s_cbranch_scc1 L_plok
                buffer_load_dwordx2 v[242:243], v244, s[44:47], s67 offen sc1
                s_waitcnt vmcnt(0)
                s_branch L_plpoll
                L_plok:
                v_sub_f32 v242, v242, v240
                v_exp_f32 v242, v242
                v_add_f32 v242, 1.0, v242
                v_rcp_f32 v242, v242
                """)
                for k in range(8): e("v_mul_f32 v%d, v%d, v242" % (FR[k], FR[k]))
                e.label("L_pw_done")
        for ee in range(8):
            d = 32 + 4*ee; a = 192 + 4*ee; b = 224 + 4*u
            e("v_mfma_f32_16x16x32_bf16 v[%d:%d], v[%d:%d], v[%d:%d], %s" % (d, d+3, a, a+3, b, b+3, "0" if u == 0 else "v[%d:%d]" % (d, d+3)))
        flags["pv%d" % u] = True
    e("""
    s_mov_b32 exec_lo, 0x000f000f
    s_mov_b32 exec_hi, 0x000f000f
    """)
    for ee in range(8): e("ds_write_b128 v20, v[%d:%d] offset:%d" % (32+4*ee, 35+4*ee, 16*ee))
    e("s_mov_b64 exec, -1")
    stamp("pv done")
    e("""
    s_waitcnt lgkmcnt(0)
    s_barrier
    s_cmp_ge_u32 s3, 2
    s_cbranch_scc1 L_o_published
    """)
    for w in range(8): e("ds_read_b128 v[%d:%d], v21 offset:%d" % (128+4*w, 131+4*w, L_OP + w*2112))
    for w in range(8):
        if w % 2 == 0: e("s_waitcnt lgkmcnt(%d)" % (6-w))
        base = 128 if w % 2 == 0 else 132
        for i in range(4):
            if w < 2: e("v_mul_f32 v%d, v%d, v%d" % (base+i, FR[w], 128+4*w+i))
            else: e("v_fmac_f32 v%d, v%d, v%d" % (base+i, FR[w], 128+4*w+i))
    for k in range(0, 4, 2): e("v_pk_add_f32 v[%d:%d], v[%d:%d], v[%d:%d]" % (128+k, 129+k, 128+k, 129+k, 132+k, 133+k))
    e("""
    v_cvt_pk_bf16_f32 v24, v128, v129
    v_cvt_pk_bf16_f32 v25, v130, v131
    v_min_u32 v24, -2, v24
    v_min_u32 v25, -2, v25
    """)
    def aloads():
        for i in range(2): e("buffer_load_dwordx4 v[%d:%d], v14, s[44:47], %s offen sc1" % (160+4*i, 163+4*i, "s68" if i else "s59"))
    if LOCAL:
        e("""
        s_cmp_gt_u32 s58, 0xff
        s_cbranch_scc1 L_o_remote
        buffer_store_dwordx2 v[24:25], v22, s[44:47], s20 offen %s
        s_branch L_o_published
        L_o_remote:
        """ % OSF)
    e("buffer_store_dwordx2 v[24:25], v22, s[44:47], s20 offen sc1")
    e.label("L_o_published")
    if OBAR: e("s_barrier")
    stamp("o stored")
    if NOA: e("s_branch L_fin")
    while pos[0] < len(seq): slot(False)
    aloads()
    if NOTAIL: e("s_branch L_fin")
    e("s_waitcnt vmcnt(2)")
    stamp("wo landed")
    for jj in range(2):
        for par in range(2):
            for m in range(4):
                e("v_perm_b32 v%d, v%d, v%d, s%d" % (96 + 8*jj + 4*par + m, 64+8*jj+2*m+1, 64+8*jj+2*m, 53+par))
    e("s_mov_b32 s7, 0x10000")
    e.label("L_apoll")
    e("s_waitcnt vmcnt(0)")
    e("""
    v_max3_u32 v4, v160, v161, v162
    v_max3_u32 v5, v163, v164, v165
    v_max3_u32 v4, v4, v166, v167
    v_max_u32 v4, v4, v5
    v_cmp_eq_u32 vcc, -1, v4
    s_cmp_eq_u64 vcc, 0
    s_cbranch_scc1 L_aok
    s_sub_u32 s7, s7, 1
    s_cbranch_scc1 L_aok
    s_mov_b64 exec, vcc
    """)
    if SLP: e("s_sleep %d" % SLP)
    aloads()
    e("s_branch L_apoll")
    e.label("L_aok")
    stamp("A ok")
    e("""
    s_mov_b64 exec, -1
    v_mfma_f32_16x16x32_bf16 v[32:35], v[160:163], v[96:99], 0
    v_mfma_f32_16x16x32_bf16 v[36:39], v[160:163], v[100:103], 0
    v_mfma_f32_16x16x32_bf16 v[32:35], v[164:167], v[104:107], v[32:35]
    v_mfma_f32_16x16x32_bf16 v[36:39], v[164:167], v[108:111], v[36:39]
    v_add_f32 v4, v32, v33
    v_add_f32 v6, v34, v35
    v_add_f32 v5, v36, v37
    v_add_f32 v7, v38, v39
    ds_write_b128 v15, v[4:7]
    s_waitcnt lgkmcnt(0)
    s_barrier
    s_cmp_lg_u32 s3, 0
    s_cbranch_scc1 L_fin
    """)
    for w in range(8): e("ds_read_b128 v[%d:%d], v9 offset:%d" % (128+4*w, 131+4*w, L_R3 + w*1024))
    e("""
    v_mov_b32 v30, s52
    s_mov_b32 s64, 0x07060500
    s_mov_b32 s65, 0x07060501
    s_mov_b32 s66, 0x07060502
    s_mov_b32 s67, 0x07060503
    s_waitcnt lgkmcnt(4)
    """)
    for k in range(0, 8, 2): e("v_pk_add_f32 v[%d:%d], v[%d:%d], v[%d:%d]" % (128+k, 129+k, 128+k, 129+k, 136+k, 137+k))
    e("s_waitcnt lgkmcnt(0)")
    for k in range(0, 8, 2): e("v_pk_add_f32 v[%d:%d], v[%d:%d], v[%d:%d]" % (144+k, 145+k, 144+k, 145+k, 152+k, 153+k))
    for k in range(0, 8, 2): e("v_pk_add_f32 v[%d:%d], v[%d:%d], v[%d:%d]" % (128+k, 129+k, 128+k, 129+k, 144+k, 145+k))
    for k in range(0, 4, 2): e("v_pk_add_f32 v[%d:%d], v[%d:%d], v[%d:%d]" % (128+k, 129+k, 128+k, 129+k, 132+k, 133+k))
    for k in range(4): e("v_perm_b32 v%d, v%d, v30, s%d" % (24+k, 128+k, 64+k))
    e("buffer_store_dwordx4 v[24:27], v23, s[44:47], s63 offen sc1")
    stamp("po published")
    e("""
    s_mov_b32 s7, 0x10000
    s_mov_b32 s64, 0x0c0c0400
    s_mov_b32 s65, 0x04000c0c
    """)
    e.label("L_p4poll")
    e("""
    buffer_load_dwordx4 v[4:7], v9, s[44:47], s60 offen sc1
    s_waitcnt vmcnt(0)
    v_perm_b32 v30, v5, v4, s64
    v_perm_b32 v31, v7, v6, s65
    v_or_b32 v30, v30, v31
    v_cmp_ne_u32 vcc, s52, v30
    s_cmp_eq_u64 vcc, 0
    s_cbranch_scc1 L_p4ok
    s_mov_b64 exec, vcc
    s_sub_u32 s7, s7, 1
    s_cbranch_scc0 L_p4poll
    """)
    e.label("L_p4ok")
    stamp("p4 ok")
    e.c("reduce over src g = lane>>3. swap32(v4,v6): lo half keeps b0, hi half b1 ...")
    e("""
    s_mov_b64 exec, -1
    v_permlane32_swap_b32 v4, v6
    v_permlane32_swap_b32 v5, v7
    v_add_f32 v4, v4, v6
    v_add_f32 v5, v5, v7
    v_permlane16_swap_b32 v4, v5
    v_add_f32 v4, v4, v5
    v_add_f32_dpp v4, v4, v4 row_ror:8 row_mask:0xf bank_mask:0xf
    """)
    e.c("rows: 0=(b0,E) 1=(b0,O) 2=(b1,E) 3=(b1,O), item q = lane&7")
    e("""
    v_cvt_pk_bf16_f32 v4, v4, v4
    s_mov_b32 exec_lo, 0x00ff00ff
    s_mov_b32 exec_hi, 0x00ff00ff
    buffer_store_short v4, v10, s[48:51], s21 offen
    s_cmp_lg_u32 s62, 0
    s_cbranch_scc1 L_fin2
    s_mov_b64 exec, 1
    v_mov_b32 v4, s52
    s_lshl_b32 s61, s5, 8
    buffer_store_dword v4, off, s[44:47], s61 sc1
    """)
    e.label("L_fin2")
    e("s_mov_b64 exec, -1")
    stamp("p4 done")
    e.label("L_fin")
    if stamps:
        e("s_waitcnt vmcnt(0)")
        e("s_memrealtime s[100:101]")
        e("s_waitcnt lgkmcnt(0)")
        for k in range(32): e("v_writelane_b32 v4, s%d, %d" % (70+k, k))
        e("""
        s_lshl_b32 s7, s2, 4
        s_add_u32 s7, s7, s3
        s_lshl_b32 s7, s7, 7
        s_add_u32 s7, s7, %d
        v_lshlrev_b32 v5, 2, v1
        s_mov_b32 exec_hi, 0
        buffer_store_dword v4, v5, s[44:47], s7 offen
        """ % WS_STAMP)
    e.label("L_end")
    e("s_endpgm")
    e.raw('.section .rodata,"a"\n.p2align 6\n.amdhsa_kernel %s_kernel\n  .amdhsa_next_free_vgpr 256\n  .amdhsa_next_free_sgpr 102\n  .amdhsa_accum_offset 256\n  .amdhsa_group_segment_fixed_size 0\n  .amdhsa_kernarg_size 104\n  .amdhsa_user_sgpr_count 2\n  .amdhsa_user_sgpr_kernarg_segment_ptr 1\n  .amdhsa_system_sgpr_workgroup_id_x 1\n.end_amdhsa_kernel' % NAME)
    open(out, "w").write(e.text())
    return build(out)

if __name__ == "__main__":
    gen("k13d_plain.s")
    gen("k13r1_plain.s", ROT=1); gen("k13r1_stamp.s", ROT=1, stamps=True)
    gen("k13r2_plain.s", ROT=2)
    gen("k13r3_plain.s", ROT=3)
```
